```python
import torch

def _softmax(x, axis=-1):
    return torch.softmax(x, dim=axis)

def _gelu(x):
    return torch.nn.functional.gelu(x, approximate='tanh')

def _silu(x):
    return torch.nn.functional.silu(x)

def _sigmoid(x):
    return torch.sigmoid(x)

def _layernorm(x, axis=-1, eps=1e-05):
    m = x.mean(dim=axis, keepdim=True)
    v = x.var(dim=axis, keepdim=True, unbiased=False)
    return (x - m) / torch.sqrt(v + eps)

def _scatter_add(tgt, idx, src, axis=0):
    return tgt.clone().index_add_(axis, idx, src)

def _segment_sum(src, seg, n):
    out = torch.zeros((n,) + src.shape[1:], dtype=src.dtype)
    return out.index_add_(0, seg, src)

def _pad(x, pw):
    flat = tuple((v for pair in reversed(pw) for v in pair))
    return torch.nn.functional.pad(x, flat)
kernel_name = 'adaLN_cond__mha_block__moe_arch_mod__prompt'

def setup_inputs():

    _w = lambda a: (lambda t: t.to(torch.bfloat16) if t.is_floating_point() else t)(torch.as_tensor(a))

    def _A_setup():
        B, S, D, H = (1, 2048, 512, 32)
        return {'x': _w((lambda *s: torch.randn(*s, dtype=torch.bfloat16) * 0.05)(B, S, D)), 'wqkv': _w((lambda *s: torch.randn(*s, dtype=torch.bfloat16) * 0.05)(D, 3 * D)), 'wo': _w((lambda *s: torch.randn(*s, dtype=torch.bfloat16) * 0.05)(D, D))}
    _A_in = _A_setup()

    def _B_setup():
        B, S, D, F, C = (1, 2048, 512, 1792, 2)
        return {'x': _w((lambda *s: torch.randn(*s, dtype=torch.bfloat16) * 0.05)(B, S, D)), 'w_r': _w((lambda *s: torch.randn(*s, dtype=torch.bfloat16) * 0.05)(D)), 'w_gate': _w((lambda *s: torch.randn(*s, dtype=torch.bfloat16) * 0.05)(D, F)), 'w_up': _w((lambda *s: torch.randn(*s, dtype=torch.bfloat16) * 0.05)(D, F)), 'w_down': _w((lambda *s: torch.randn(*s, dtype=torch.bfloat16) * 0.05)(F, D))}
    _B_in = _B_setup()
    return {'A_x': _A_in['x'], 'A_wqkv': _A_in['wqkv'], 'A_wo': _A_in['wo'], 'B_x': _B_in['x'], 'B_w_r': _B_in['w_r'], 'B_w_gate': _B_in['w_gate'], 'B_w_up': _B_in['w_up'], 'B_w_down': _B_in['w_down'], 'c': _w((lambda *s: torch.randn(*s, dtype=torch.bfloat16) * 0.1)(1, 512) * 8.0), 'w_mod': _w((lambda *s: torch.randn(*s, dtype=torch.bfloat16) * 0.1)(512, 6 * 512) * 512 ** (-0.5) * 8.0)}

def reference(A_x, A_wqkv, A_wo, B_x, B_w_r, B_w_gate, B_w_up, B_w_down, c, w_mod):

    def _A_ref(x, wqkv, wo):
        B, S, D = x.shape
        H = 32
        Dh = D // H
        qkv = (lambda x, *d: x.permute(*d))((x @ wqkv).reshape(B, S, 3, H, Dh), 2, 0, 3, 1, 4)
        q, k, v = (qkv[0], qkv[1], qkv[2])
        scores = torch.einsum('bhqd,bhkd->bhqk', q, k) * Dh ** (-0.5)
        p = _softmax(scores, axis=-1)
        o = torch.einsum('bhqk,bhkd->bhqd', p, v)
        return (lambda x, *d: x.permute(*d))(o, 0, 2, 1, 3).reshape(B, S, D) @ wo

    def _B_ref(x, w_r, w_gate, w_up, w_down):
        B, S, D = x.shape
        C = 2
        r = x @ w_r
        idx = torch.argsort(-r, axis=-1)[:, :C]
        idx_e = (lambda x, n, axis: torch.repeat_interleave(x, n, dim=axis))(idx.reshape(B, C, 1), D, axis=2)
        x_sel = (lambda x, i, axis: torch.take_along_dim(x, i, dim=axis))(x, idx_e, axis=1)
        g = _silu(x_sel @ w_gate)
        u = x_sel @ w_up
        y = g * u @ w_down
        r_sel = _sigmoid((lambda x, i, axis: torch.take_along_dim(x, i, dim=axis))(r, idx, axis=1))
        y = y * r_sel.reshape(B, C, 1)
        b_off = (torch.arange(B) * S).reshape(B, 1)
        flat_idx = (idx + b_off).reshape(B * C)
        zero = (x * 0.0).reshape(B * S, D)
        upd = _scatter_add(zero, flat_idx, y.reshape(B * C, D), axis=0)
        return x + upd.reshape(B, S, D)
    x = A_x
    mod = (_silu(c) @ w_mod).reshape(c.shape[0], 6, 1, -1)
    sa, ca, ga, sb, cb, gb = (mod[:, 0].clone(), mod[:, 1].clone(), mod[:, 2].clone(), mod[:, 3].clone(), mod[:, 4].clone(), mod[:, 5].clone())
    h = _layernorm(x, axis=-1) * (1 + ca) + sa
    x = x + ga * _A_ref(h, A_wqkv, A_wo)
    h = _layernorm(x, axis=-1) * (1 + cb) + sb
    x = x + gb * _B_ref(h, B_w_r, B_w_gate, B_w_up, B_w_down)
    return x
```

```python
KA = dict(x=0, wqkv=8, wo=16, bx=24, wr=32, wg=40, wu=48, wd=56, c=64, wmod=72, out=80, dbg=88, ws=96)

MOD   = 0x000000
CVEC  = 0x003000
CONS  = 0x003800
STATS = 0x004000
SEL   = 0x00A000
YP    = 0x010000
XH    = 0x100000
WQ    = 0x300000
WO    = 0x480000
QF    = 0x500000
KF    = 0x700000
VF    = 0x900000
OF    = 0xB00000
X1    = 0xD00000
WS_BYTES = 0xF00000

LOG2E = 0x3fb8aa3b
NLOG2E = 0xbfb8aa3b

class Asm:
    def __init__(self):
        self.L = []
    def __call__(self, s):
        for line in s.split("\n"):
            line = line.strip()
            if line:
                self.L.append("    " + line)
    def label(self, s):
        self.L.append(s + ":")
    def raw(self, s):
        self.L.append(s)
    def text(self):
        return "\n".join(self.L) + "\n"

def vr(b, n=1):
    return f"v{b}" if n == 1 else f"v[{b}:{b+n-1}]"
def ar(b, n=1):
    return f"a{b}" if n == 1 else f"a[{b}:{b+n-1}]"
def sr(b, n=1):
    return f"s{b}" if n == 1 else f"s[{b}:{b+n-1}]"

def load_srd(a, d, name, nbytes):
    a(f"s_load_dwordx2 s[{d}:{d+1}], s[0:1], {KA[name]}")
    a(f"s_mov_b32 s{d+2}, {nbytes}")
    a(f"s_mov_b32 s{d+3}, 0x20000")

def kernel_begin(a, name):
    a.raw(".text")
    a.raw(f".globl {name}")
    a.raw(".p2align 8")
    a.raw(f".type {name},@function")
    a.label(name)

def kernel_desc(name, nvgpr, nagpr=0, nsgpr=64):
    acc = (nvgpr + 3) // 4 * 4
    nfv = acc + nagpr if nagpr else nvgpr
    return f""".amdhsa_kernel {name}
  .amdhsa_next_free_vgpr {nfv}
  .amdhsa_next_free_sgpr {nsgpr}
  .amdhsa_accum_offset {acc}
  .amdhsa_group_segment_fixed_size 0
  .amdhsa_kernarg_size 104
  .amdhsa_user_sgpr_count 2
  .amdhsa_user_sgpr_kernarg_segment_ptr 1
  .amdhsa_system_sgpr_workgroup_id_x 1
.end_amdhsa_kernel
"""

def bf16_round(a, regs):
    for r in regs:
        a(f"v_cvt_pk_bf16_f32 v{r}, v{r}, v{r}")
    for r in regs:
        a(f"v_and_b32 v{r}, 0xffff0000, v{r}")

def wave_allsum(a, regs, tmps, op="v_add_f32"):
    n = len(regs)
    pad = "s_nop 1" if n < 3 else None
    for mod in ("quad_perm:[1,0,3,2]", "quad_perm:[2,3,0,1]", "row_ror:4", "row_ror:8"):
        if pad: a(pad)
        for r in regs:
            a(f"{op}_dpp v{r}, v{r}, v{r} {mod} row_mask:0xf bank_mask:0xf")
    for sw in ("v_permlane16_swap_b32", "v_permlane32_swap_b32"):
        for r, t in zip(regs, tmps):
            a(f"v_mov_b32 v{t}, v{r}")
        a("s_nop 1")
        for r, t in zip(regs, tmps):
            a(f"{sw} v{r}, v{t}")
        a("s_nop 1")
        for r, t in zip(regs, tmps):
            a(f"{op} v{r}, v{r}, v{t}")
```

```python
from common import *

N_MOD, N_LN, N_W = 192, 128, 128
NWG1 = N_MOD + N_LN + N_W + 1

def gen_k1(a):
    kernel_begin(a, "k1_kernel")
    a(f"s_cmp_ge_u32 s2, {NWG1}")
    a("s_cbranch_scc1 K1_END")
    load_srd(a, 8, "ws", WS_BYTES)
    a(f"s_cmp_lt_u32 s2, {N_MOD}")
    a("s_cbranch_scc1 K1_MOD")
    a(f"s_cmp_lt_u32 s2, {N_MOD+N_LN}")
    a("s_cbranch_scc1 K1_LN")
    a(f"s_cmp_lt_u32 s2, {N_MOD+N_LN+N_W}")
    a("s_cbranch_scc1 K1_W")
    a("v_lshlrev_b32 v1, 4, v0")
    a(f"v_add_u32 v1, {STATS}, v1")
    for i in range(4):
        a(f"v_mov_b32 v{4+i}, 0")
    a("s_waitcnt lgkmcnt(0)")
    for i in range(6):
        a(f"s_mov_b32 s20, {i*4096}")
        a(f"buffer_store_dwordx4 v[4:7], v1, s[8:11], s20 offen")
    a("s_endpgm")

    a.label("K1_MOD")
    load_srd(a, 12, "wmod", 512*6144)
    load_srd(a, 16, "c", 1024)
    a("""
    s_and_b32 s20, s2, 7
    s_mul_i32 s20, s20, 6
    s_lshr_b32 s21, s2, 5
    s_add_u32 s20, s20, s21
    s_lshl_b32 s20, s20, 2
    s_lshr_b32 s21, s2, 3
    s_and_b32 s21, s21, 3
    s_add_u32 s20, s20, s21
    s_lshl_b32 s21, s20, 5
    v_lshrrev_b32 v1, 1, v0
    v_and_b32 v2, 1, v0
    v_mul_u32_u24 v3, 6144, v1
    v_lshl_add_u32 v3, v2, 4, v3
    v_add_u32 v3, s21, v3
    v_lshlrev_b32 v4, 1, v1
    s_mov_b32 s22, 786432
    s_mov_b32 s23, 1572864
    s_mov_b32 s24, 2359296
    s_waitcnt lgkmcnt(0)
    """)
    for i in range(4):
        a(f"buffer_load_ushort v{8+i}, v4, s[16:19], 0 offen offset:{256*i}")
    for i, so in enumerate(("0", "s22", "s23", "s24")):
        a(f"buffer_load_dwordx4 v[{12+4*i}:{15+4*i}], v3, s[12:15], {so} offen")
    a("v_lshrrev_b32 v5, 4, v0")
    a("v_lshlrev_b32 v5, 6, v5")
    a("v_lshl_add_u32 v5, v2, 5, v5")
    a("""
    s_lshr_b32 s25, s20, 5
    s_mov_b32 s26, 0
    s_cmp_eq_u32 s25, 1
    s_cselect_b32 s26, 1.0, s26
    s_cmp_eq_u32 s25, 4
    s_cselect_b32 s26, 1.0, s26
    """)
    a("s_waitcnt vmcnt(4)")
    for i in range(4): a(f"v_lshlrev_b32 v{8+i}, 16, v{8+i}")
    for i in range(4): a(f"v_mul_f32 v{28+i}, {hex(NLOG2E)}, v{8+i}")
    for i in range(4): a(f"v_exp_f32 v{28+i}, v{28+i}")
    for i in range(4): a(f"v_add_f32 v{28+i}, 1.0, v{28+i}")
    for i in range(4): a(f"v_rcp_f32 v{28+i}, v{28+i}")
    for i in range(4): a(f"v_mul_f32 v{8+i}, v{8+i}, v{28+i}")
    bf16_round(a, [8, 9, 10, 11])
    for i in range(4):
        a(f"s_waitcnt vmcnt({3-i})")
        for d in range(4):
            w = 12 + 4*i + d
            a(f"v_lshlrev_b32 v28, 16, v{w}")
            a(f"v_and_b32 v29, 0xffff0000, v{w}")
            if i == 0:
                a(f"v_mul_f32 v{32+2*d}, v28, v8")
                a(f"v_mul_f32 v{33+2*d}, v29, v8")
            else:
                a(f"v_fmac_f32 v{32+2*d}, v28, v{8+i}")
                a(f"v_fmac_f32 v{33+2*d}, v29, v{8+i}")
    a("s_nop 1")
    for mod in ("quad_perm:[2,3,0,1]", "row_ror:4", "row_ror:8"):
        for r in range(32, 40):
            a(f"v_add_f32_dpp v{r}, v{r}, v{r} {mod} row_mask:0xf bank_mask:0xf")
    a("s_mov_b32 exec_lo, 0x00030003")
    a("s_mov_b32 exec_hi, 0x00030003")
    a("ds_write_b128 v5, v[32:35]")
    a("ds_write_b128 v5, v[36:39] offset:16")
    a("s_mov_b64 exec, -1")
    a("v_readfirstlane_b32 s27, v0")
    a("s_waitcnt lgkmcnt(0)")
    a("s_barrier")
    a("s_cmp_ge_u32 s27, 64")
    a("s_cbranch_scc1 K1_END")
    a("v_and_b32 v6, 15, v0")
    a("v_lshlrev_b32 v6, 2, v6")
    for p in range(16):
        a(f"ds_read_b32 v{8+p}, v6 offset:{64*p}")
        if p == 7: a("s_waitcnt lgkmcnt(4)")
    a(f"s_lshl_b32 s21, s20, 6")
    a(f"v_add_u32 v7, s21, v6")
    a("s_waitcnt lgkmcnt(0)")
    for st in (8, 4, 2, 1):
        for p in range(st):
            a(f"v_add_f32 v{8+p}, v{8+p}, v{8+p+st}")
    bf16_round(a, [8])
    a("v_add_f32 v8, s26, v8")
    bf16_round(a, [8])
    a("s_mov_b64 exec, 0xffff")
    a("buffer_store_dword v8, v7, s[8:11], 0 offen")
    a("s_endpgm")

    a.label("K1_LN")
    load_srd(a, 12, "x", 2048*1024)
    a(f"s_sub_u32 s20, s2, {N_MOD}")
    a("s_lshl_b32 s20, s20, 14")
    a("v_lshrrev_b32 v1, 6, v0")
    a("v_and_b32 v2, 63, v0")
    a("v_lshlrev_b32 v1, 12, v1")
    a("v_lshl_add_u32 v1, v2, 4, v1")
    a("v_add_u32 v1, s20, v1")
    a("s_waitcnt lgkmcnt(0)")
    for i in range(4):
        a(f"buffer_load_dwordx4 v[{4+4*i}:{7+4*i}], v1, s[12:15], 0 offen offset:{1024*i}")
    a(f"v_add_u32 v2, {XH}, v1")
    F = 24
    S = 56
    for i in range(4):
        a(f"s_waitcnt vmcnt({3-i})")
        for d in range(4):
            a(f"v_lshlrev_b32 v{F+8*i+2*d}, 16, v{4+4*i+d}")
            a(f"v_and_b32 v{F+8*i+2*d+1}, 0xffff0000, v{4+4*i+d}")
        b = F + 8*i
        a(f"v_add_f32 v{S+i}, v{b}, v{b+1}")
        for e in range(2, 8):
            a(f"v_add_f32 v{S+i}, v{S+i}, v{b+e}")
    wave_allsum(a, [S+i for i in range(4)], [S+4+i for i in range(4)])
    M = 64
    V = 68
    for i in range(4):
        a(f"v_mul_f32 v{M+i}, 0x3b000000, v{S+i}")
    for i in range(4):
        b = F + 8*i
        a(f"v_sub_f32 v72, v{b}, v{M+i}")
        a(f"v_mul_f32 v{V+i}, v72, v72")
        for e in range(1, 8):
            a(f"v_sub_f32 v72, v{b+e}, v{M+i}")
            a(f"v_fmac_f32 v{V+i}, v72, v72")
    wave_allsum(a, [V+i for i in range(4)], [S+4+i for i in range(4)])
    for i in range(4):
        a(f"v_mul_f32 v{V+i}, 0x3b000000, v{V+i}")
    bf16_round(a, [M+i for i in range(4)] + [V+i for i in range(4)])
    for i in range(4):
        a(f"v_add_f32 v{V+i}, 0x3727c5ac, v{V+i}")
    bf16_round(a, [V+i for i in range(4)])
    for i in range(4):
        a(f"v_sqrt_f32 v{V+i}, v{V+i}")
    a("s_nop 0")
    bf16_round(a, [V+i for i in range(4)])
    for i in range(4):
        a(f"v_rcp_f32 v{V+i}, v{V+i}")
    for i in range(4):
        b = F + 8*i
        for e in range(8):
            a(f"v_sub_f32 v{b+e}, v{b+e}, v{M+i}")
        for d in range(4):
            a(f"v_cvt_pk_bf16_f32 v{4+4*i+d}, v{b+2*d}, v{b+2*d+1}")
        for d in range(4):
            a(f"v_lshlrev_b32 v{b+2*d}, 16, v{4+4*i+d}")
            a(f"v_and_b32 v{b+2*d+1}, 0xffff0000, v{4+4*i+d}")
        for e in range(8):
            a(f"v_mul_f32 v{b+e}, v{b+e}, v{V+i}")
        for d in range(4):
            a(f"v_cvt_pk_bf16_f32 v{4+4*i+d}, v{b+2*d}, v{b+2*d+1}")
        a(f"buffer_store_dwordx4 v[{4+4*i}:{7+4*i}], v2, s[8:11], 0 offen offset:{1024*i}")
    a("s_endpgm")

    a.label("K1_W")
    a(f"s_sub_u32 s20, s2, {N_MOD+N_LN}")
    a("v_readfirstlane_b32 s21, v0")
    a("s_lshr_b32 s21, s21, 6")
    a("s_lshl_b32 s20, s20, 2")
    a("s_add_u32 s20, s20, s21")
    a("v_and_b32 v2, 63, v0")
    a("s_mov_b32 s28, 0x05040100")
    a("s_mov_b32 s29, 0x07060302")
    a("s_cmp_ge_u32 s20, 384")
    a("s_cbranch_scc1 K1_WO")
    load_srd(a, 12, "wqkv", 512*3072)
    a("s_mul_i32 s21, s20, 5462")
    a("s_lshr_b32 s21, s21, 16")
    a("s_mul_i32 s22, s21, 12")
    a("s_sub_u32 s22, s20, s22")
    a("s_mul_i32 s23, s21, 49152")
    a("s_lshl_b32 s24, s22, 8")
    a("s_add_u32 s23, s23, s24")
    a("v_lshlrev_b32 v1, 2, v2")
    a("v_add_u32 v1, s23, v1")
    a("s_waitcnt lgkmcnt(0)")
    for r in range(16):
        a(f"s_mov_b32 s25, {r*3072}")
        a(f"buffer_load_dword v{8+r}, v1, s[12:15], s25 offen")
    a("s_lshl_b32 s24, s22, 17")
    a("s_lshl_b32 s25, s21, 10")
    a("s_add_u32 s24, s24, s25")
    a(f"s_add_u32 s24, s24, {WQ}")
    a("v_lshrrev_b32 v3, 4, v2")
    a("v_lshlrev_b32 v3, 15, v3")
    a("v_and_b32 v4, 15, v2")
    a("v_lshl_add_u32 v3, v4, 5, v3")
    a("v_add_u32 v3, s24, v3")
    a("s_waitcnt vmcnt(0)")
    for h in range(2):
        for e in range(2):
            d = 24 + 8*h + 4*e
            for i in range(4):
                r0, r1 = 8*h + 2*i, 8*h + 2*i + 1
                a(f"v_perm_b32 v{d+i}, v{8+r1}, v{8+r0}, s{28+e}")
            a(f"buffer_store_dwordx4 v[{d}:{d+3}], v3, s[8:11], 0 offen offset:{512*h+16*e}")
    a("s_endpgm")
    a.label("K1_WO")
    load_srd(a, 12, "wo", 512*1024)
    a("s_sub_u32 s20, s20, 384")
    a("s_lshr_b32 s21, s20, 2")
    a("s_and_b32 s22, s20, 3")
    a("s_lshl_b32 s23, s21, 14")
    a("s_lshl_b32 s24, s22, 8")
    a("s_add_u32 s23, s23, s24")
    a("v_lshlrev_b32 v1, 2, v2")
    a("v_add_u32 v1, s23, v1")
    a("s_waitcnt lgkmcnt(0)")
    for r in range(16):
        a(f"s_mov_b32 s25, {r*1024}")
        a(f"buffer_load_dword v{8+r}, v1, s[12:15], s25 offen")
    a("s_lshl_b32 s24, s22, 17")
    a("s_lshl_b32 s25, s21, 10")
    a("s_add_u32 s24, s24, s25")
    a(f"s_add_u32 s24, s24, {WO}")
    a("v_lshrrev_b32 v3, 4, v2")
    a("v_lshlrev_b32 v3, 15, v3")
    a("v_and_b32 v4, 1, v2")
    a("v_lshl_add_u32 v3, v4, 5, v3")
    a("v_bfe_u32 v4, v2, 3, 1")
    a("v_lshl_add_u32 v3, v4, 6, v3")
    a("v_bfe_u32 v4, v2, 1, 2")
    a("v_lshl_add_u32 v3, v4, 7, v3")
    a("v_add_u32 v3, s24, v3")
    a("s_waitcnt vmcnt(0)")
    for h in range(2):
        for e in range(2):
            d = 24 + 8*h + 4*e
            for i in range(4):
                j0, j1 = 2*i, 2*i + 1
                r0 = (j0 & 3) + 8*(j0 >> 2) + 4*h
                r1 = (j1 & 3) + 8*(j1 >> 2) + 4*h
                a(f"v_perm_b32 v{d+i}, v{8+r1}, v{8+r0}, s{28+e}")
            a(f"buffer_store_dwordx4 v[{d}:{d+3}], v3, s[8:11], 0 offen offset:{512*h+16*e}")
    a.label("K1_END")
    a("s_endpgm")
    return ("k1_kernel", NWG1, 256, 1024, kernel_desc("k1_kernel", 80, 0, 32))
```

```python
from common import *

NWG2 = 257
QSCALE = 0x3eb8aa3b

def gen_k2(a):
    kernel_begin(a, "k2_kernel")
    a(f"s_cmp_ge_u32 s2, {NWG2}")
    a("s_cbranch_scc1 K2_END")
    load_srd(a, 8, "ws", WS_BYTES)
    a("s_cmp_eq_u32 s2, 256")
    a("s_cbranch_scc1 K2_CV")
    a("s_and_b32 s20, s2, 7")
    a("s_lshr_b32 s21, s2, 3")
    a("v_readfirstlane_b32 s22, v0")
    a("s_lshr_b32 s22, s22, 6")
    a("s_and_b32 s23, s22, 1")
    a("s_lshr_b32 s24, s22, 1")
    a("v_and_b32 v1, 63, v0")
    a("v_lshlrev_b32 v2, 4, v1")
    a("s_lshl_b32 s25, s21, 16")
    a("s_lshl_b32 s26, s22, 14")
    a("s_add_u32 s25, s25, s26")
    a(f"s_add_u32 s25, s25, {XH}")
    a("v_add_u32 v3, s25, v2")
    a("v_lshlrev_b32 v4, 5, v1")
    XR = 96
    SC = 160
    SH = 168
    a("s_lshl_b32 s26, s20, 1")
    a("s_add_u32 s26, s26, s23")
    a("s_lshl_b32 s26, s26, 15")
    a("s_lshl_b32 s27, s24, 14")
    a("s_add_u32 s26, s26, s27")
    a(f"s_add_u32 s26, s26, {WQ}")
    a(f"s_add_u32 s27, s26, {16*32768}")
    a(f"s_add_u32 s28, s26, {32*32768}")
    a("s_mov_b32 s29, 4096")
    a("s_mov_b32 s30, 8192")
    a("s_mov_b32 s31, 12288")
    a("v_add_u32 v5, 4096, v2")
    a("v_add_u32 v6, 8192, v2")
    a("v_add_u32 v7, 12288, v2")
    a("s_waitcnt lgkmcnt(0)")
    for d in range(2):
        a(f"buffer_load_dwordx4 v[{SC+4*d}:{SC+4*d+3}], v4, s[8:11], 0 offen offset:{MOD+2048+16*d}")
        a(f"buffer_load_dwordx4 v[{SH+4*d}:{SH+4*d+3}], v4, s[8:11], 0 offen offset:{MOD+16*d}")
    for i in range(16):
        so = ("0", "s29", "s30", "s31")[i >> 2]
        a(f"buffer_load_dwordx4 v[{XR+4*i}:{XR+4*i+3}], v3, s[8:11], {so} offen offset:{1024*(i&3)}")
    def wload(i):
        va = (2, 5, 6, 7)[i >> 2]
        for t in range(3):
            r = (i*3 + t)*4
            a(f"buffer_load_dwordx4 a[{r}:{r+3}], v{va}, s[8:11], s{26+t} offen offset:{1024*(i&3)}")
    for i in range(14):
        wload(i)
    a("v_lshrrev_b32 v8, 1, v1")
    a("v_lshlrev_b32 v8, 10, v8")
    a("v_and_b32 v9, 1, v1")
    a("v_lshl_add_u32 v8, v9, 9, v8")
    a("v_and_b32 v9, 7, v1")
    a("v_lshl_add_u32 v8, v9, 4, v8")
    a("s_lshl_b32 s32, s24, 15")
    a("s_lshl_b32 s33, s23, 8")
    a("s_add_u32 s32, s32, s33")
    a("v_add_u32 v8, s32, v8")
    a("v_and_b32 v9, 31, v1")
    a("v_lshrrev_b32 v10, 5, v1")
    a("v_xor_b32 v9, v9, v10")
    a("v_lshlrev_b32 v9, 4, v9")
    a("v_lshl_add_u32 v9, v10, 9, v9")
    a("s_mul_i32 s33, s24, 49152")
    a("v_add_u32 v9, s33, v9")
    RA = 176
    for q in range(4):
        a(f"v_xor_b32 v{RA+q}, {q*32}, v9")
        a(f"v_xor_b32 v{RA+4+q}, {32768+q*32}, v9")
    T = 184
    for i in range(16):
        if i == 8:
            wload(14); wload(15)
        a(f"s_waitcnt vmcnt({57-i if i < 8 else 63-i})")
        x = XR + 4*i
        for d in range(4):
            a(f"v_lshlrev_b32 v{T+2*d}, 16, v{x+d}")
            a(f"v_and_b32 v{T+2*d+1}, 0xffff0000, v{x+d}")
        for d in range(4):
            a(f"v_pk_fma_f32 v[{T+2*d}:{T+2*d+1}], v[{T+2*d}:{T+2*d+1}], v[{SC+2*d}:{SC+2*d+1}], v[{SH+2*d}:{SH+2*d+1}]")
        a(f"v_xor_b32 v10, {16*i}, v8")
        for d in range(4):
            a(f"v_cvt_pk_bf16_f32 v{x+d}, v{T+2*d}, v{T+2*d+1}")
        a(f"ds_write_b128 v10, v[{x}:{x+3}]")
    a("s_waitcnt lgkmcnt(0)")
    a("s_barrier")
    a("v_mov_b32 v192, v1")
    a("v_mov_b32 v193, v2")
    AF = 200
    def rd(i):
        b = AF + (i & 1)*8
        for st in range(2):
            a(f"ds_read_b128 v[{b+4*st}:{b+4*st+3}], v{RA+4*st+(i&3)} offset:{i*1024}")
    rd(0)
    for i in range(16):
        if i < 15:
            rd(i+1)
            a(f"s_waitcnt vmcnt({45-3*i}) lgkmcnt(2)")
        else:
            a(f"s_waitcnt vmcnt(0) lgkmcnt(0)")
        b = AF + (i & 1)*8
        for st in range(2):
            for t in range(3):
                acc = (st*3 + t)*16
                w = (i*3 + t)*4
                c = "0" if i == 0 else f"v[{acc}:{acc+15}]"
                if t < 2:
                    a(f"v_mfma_f32_32x32x16_bf16 v[{acc}:{acc+15}], a[{w}:{w+3}], v[{b+4*st}:{b+4*st+3}], {c}")
                else:
                    a(f"v_mfma_f32_32x32x16_bf16 v[{acc}:{acc+15}], v[{b+4*st}:{b+4*st+3}], a[{w}:{w+3}], {c}")
    a("s_barrier")
    a("s_xor_b32 s33, s22, 2")
    a("s_mul_i32 s33, s33, 12288")
    a("v_add_u32 v96, s33, v193")
    a("s_mul_i32 s34, s22, 12288")
    a("v_add_u32 v97, s34, v193")
    a("s_nop 7")
    for q in range(12):
        a(f"ds_write_b128 v96, v[{48+4*q}:{51+4*q}] offset:{q*1024}")
    a("s_lshl_b32 s35, s20, 2")
    a("s_lshl_b32 s36, s23, 1")
    a("s_add_u32 s35, s35, s36")
    a("s_lshl_b32 s35, s35, 16")
    a("s_lshl_b32 s36, s21, 1")
    a("s_add_u32 s36, s36, s24")
    a("s_lshl_b32 s36, s36, 10")
    a("s_add_u32 s35, s35, s36")
    a(f"s_add_u32 s36, s35, {QF}")
    a(f"s_add_u32 s37, s35, {QF+65536}")
    a(f"s_add_u32 s38, s35, {KF}")
    a(f"s_add_u32 s39, s35, {KF+65536}")
    a(f"s_add_u32 s40, s35, {VF}")
    a("v_bfe_u32 v98, v192, 4, 1")
    a("v_lshlrev_b32 v98, 16, v98")
    a("v_lshrrev_b32 v99, 5, v192")
    a("v_lshl_add_u32 v98, v99, 8, v98")
    a("v_and_b32 v99, 15, v192")
    a("v_lshl_add_u32 v98, v99, 4, v98")
    a(f"s_mov_b32 s41, {hex(QSCALE)}")
    a("s_waitcnt lgkmcnt(0)")
    a("s_barrier")
    for q in range(12):
        a(f"ds_read_b128 v[{48+4*q}:{51+4*q}], v97 offset:{q*1024}")
    for t in range(3):
        a(f"s_waitcnt lgkmcnt({8-4*t})")
        for r in range(0, 16, 2):
            a(f"v_pk_add_f32 v[{16*t+r}:{16*t+r+1}], v[{16*t+r}:{16*t+r+1}], v[{48+16*t+r}:{48+16*t+r+1}]")
        if t == 0:
            for r in range(16):
                a(f"v_mul_f32 v{r}, s41, v{r}")
        P = 100 + 8*t
        for d in range(8):
            a(f"v_cvt_pk_bf16_f32 v{P+d}, v{16*t+2*d}, v{16*t+2*d+1}")
        if t < 2:
            a(f"buffer_store_dwordx4 v[{P}:{P+3}], v193, s[8:11], s{36+2*t} offen")
            a(f"buffer_store_dwordx4 v[{P+4}:{P+7}], v193, s[8:11], s{37+2*t} offen")
        else:
            a(f"buffer_store_dwordx4 v[{P}:{P+3}], v98, s[8:11], s40 offen")
            a(f"buffer_store_dwordx4 v[{P+4}:{P+7}], v98, s[8:11], s40 offen offset:512")
    a("s_endpgm")

    a.label("K2_CV")
    load_srd(a, 12, "wr", 1024)
    a("v_lshlrev_b32 v1, 3, v0")
    a("v_lshlrev_b32 v2, 2, v0")
    a(f"s_mov_b32 s20, {MOD+3*2048}")
    a(f"s_mov_b32 s21, {MOD+4*2048}")
    a(f"s_mov_b32 s22, {CVEC}")
    a("s_waitcnt lgkmcnt(0)")
    a("buffer_load_dwordx2 v[4:5], v1, s[8:11], s20 offen")
    a("buffer_load_dwordx2 v[6:7], v1, s[8:11], s21 offen")
    a("buffer_load_dword v8, v2, s[12:15], 0 offen")
    a("v_lshrrev_b32 v3, 6, v0")
    a("v_lshlrev_b32 v3, 3, v3")
    a("s_waitcnt vmcnt(0)")
    a("v_lshlrev_b32 v10, 16, v8")
    a("v_and_b32 v11, 0xffff0000, v8")
    a("v_mul_f32 v6, v6, v10")
    a("v_mul_f32 v7, v7, v11")
    a("buffer_store_dwordx2 v[6:7], v1, s[8:11], s22 offen")
    a("v_add_f32 v12, v6, v7")
    a("v_mul_f32 v13, v4, v10")
    a("v_fmac_f32 v13, v5, v11")
    wave_allsum(a, [12, 13], [14, 15])
    a("ds_write_b64 v3, v[12:13]")
    a("s_waitcnt lgkmcnt(0)")
    a("s_barrier")
    a("v_mov_b32 v3, 0")
    a("ds_read_b128 v[16:19], v3")
    a("ds_read_b128 v[20:23], v3 offset:16")
    a(f"v_mov_b32 v3, {CONS}")
    a("s_waitcnt lgkmcnt(0)")
    a("v_add_f32 v16, v16, v18")
    a("v_add_f32 v17, v17, v19")
    a("v_add_f32 v20, v20, v22")
    a("v_add_f32 v21, v21, v23")
    a("v_add_f32 v16, v16, v20")
    a("v_add_f32 v17, v17, v21")
    a("s_mov_b64 exec, 1")
    a("buffer_store_dwordx2 v[16:17], v3, s[8:11], 0 offen")
    a.label("K2_END")
    a("s_endpgm")
    return ("k2_kernel", NWG2, 256, 65536, kernel_desc("k2_kernel", 216, 192, 48))
```

```python
from common import *

NWG3 = 256

def gen_k3(a):
    kernel_begin(a, "k3_kernel")
    a(f"s_cmp_ge_u32 s2, {NWG3}")
    a("s_cbranch_scc1 K3_END")
    load_srd(a, 8, "ws", WS_BYTES)
    Q = [4, 8]
    NM = [16, 32]
    O = [48, 64]
    S = [80, 96]
    P = [112, 120]
    KR = 128
    VR = 144
    K0 = 176
    T = 180
    a("s_and_b32 s20, s2, 7")
    a("s_lshl_b32 s20, s20, 2")
    a("s_lshr_b32 s21, s2, 3")
    a("s_and_b32 s21, s21, 3")
    a("s_add_u32 s20, s20, s21")
    a("s_lshr_b32 s21, s2, 5")
    a("v_readfirstlane_b32 s22, v0")
    a("s_lshr_b32 s22, s22, 6")
    a("s_and_b32 s23, s22, 3")
    a("s_lshr_b32 s24, s22, 2")
    a("v_and_b32 v1, 63, v0")
    a("v_lshlrev_b32 v2, 4, v1")
    a("v_lshrrev_b32 v3, 5, v1")
    a("v_lshlrev_b32 v3, 8, v3")
    a("v_and_b32 v12, 15, v1")
    a("v_lshl_add_u32 v3, v12, 4, v3")
    a("s_lshl_b32 s25, s20, 16")
    a("s_lshl_b32 s26, s21, 3")
    a("s_lshl_b32 s27, s23, 1")
    a("s_add_u32 s26, s26, s27")
    a("s_add_u32 s27, s26, s24")
    a("s_xor_b32 s28, s27, 1")
    a("s_lshl_b32 s29, s27, 10")
    a("s_add_u32 s29, s29, s25")
    a(f"s_add_u32 s29, s29, {QF}")
    a("s_lshl_b32 s30, s28, 10")
    a("s_add_u32 s30, s30, s25")
    a(f"s_add_u32 s30, s30, {QF}")
    a(f"s_add_u32 s31, s25, {KF}")
    a("s_lshl_b32 s32, s24, 15")
    a("s_add_u32 s32, s32, s31")
    a(f"s_add_u32 s33, s32, {VF-KF}")
    a("s_mov_b32 s34, 0x0000ffff")
    a("s_mov_b32 s35, 0x0000ffff")
    for r in range(32):
        a(f"v_mov_b32 v{VR+r}, 0x3f803f80")
    a("s_waitcnt lgkmcnt(0)")
    a(f"buffer_load_dwordx4 v[{K0}:{K0+3}], v2, s[8:11], s31 offen")
    a(f"buffer_load_dwordx4 v[{Q[0]}:{Q[0]+3}], v2, s[8:11], s29 offen")
    a(f"buffer_load_dwordx4 v[{Q[1]}:{Q[1]+3}], v2, s[8:11], s30 offen")
    def loads(slot, off):
        a(f"buffer_load_dwordx4 v[{KR+4*slot}:{KR+4*slot+3}], v2, s[8:11], s32 offen offset:{off}")
        a("s_mov_b64 exec, s[34:35]")
        a(f"buffer_load_dwordx4 v[{VR+8*slot}:{VR+8*slot+3}], v3, s[8:11], s33 offen offset:{off}")
        a(f"buffer_load_dwordx4 v[{VR+8*slot+4}:{VR+8*slot+7}], v3, s[8:11], s33 offen offset:{off+512}")
        a("s_mov_b64 exec, -1")
    for j in range(3):
        loads(j, 1024*j)
    a("s_add_u32 s32, s32, 3072")
    a("s_add_u32 s33, s33, 3072")
    for x in range(2):
        for r in range(16):
            a(f"v_mov_b32 v{O[x]+r}, 0")
    for r in range(4, 8):
        a(f"v_mov_b32 v{P[1]+r}, 0")
    a("s_waitcnt vmcnt(9)")
    for x in range(2):
        a(f"v_mfma_f32_32x32x16_bf16 v[{S[x]}:{S[x]+15}], v[{K0}:{K0+3}], v[{Q[x]}:{Q[x]+3}], 0")
    a("s_nop 11")
    def tree(x, dst):
        s = S[x]
        a(f"v_max3_f32 v{dst}, v{s}, v{s+1}, v{s+2}")
        for r in range(3, 15, 2):
            a(f"v_max3_f32 v{dst}, v{dst}, v{s+r}, v{s+r+1}")
        a(f"v_max_f32 v{dst}, v{dst}, v{s+15}")
    for x in range(2):
        tree(x, T+x)
    for x in range(2):
        a(f"v_mov_b32 v{T+2+x}, v{T+x}")
    a("s_nop 1")
    for x in range(2):
        a(f"v_permlane32_swap_b32 v{T+x}, v{T+2+x}")
    for x in range(2):
        a(f"v_max_f32 v{T+x}, v{T+x}, v{T+2+x}")
    for x in range(2):
        a(f"v_xor_b32 v{T+x}, 0x80000000, v{T+x}")
    for x in range(2):
        for r in range(16):
            a(f"v_mov_b32 v{NM[x]+r}, v{T+x}")
    a("s_waitcnt vmcnt(6)")
    a(f"v_mfma_f32_32x32x16_bf16 v[{S[0]}:{S[0]+15}], v[{KR}:{KR+3}], v[{Q[0]}:{Q[0]+3}], v[{NM[0]}:{NM[0]+15}]")
    a("s_mov_b32 s36, 8")
    a("s_nop 9")
    a.raw(".p2align 6")
    a.label("K3_LOOP")
    def e(x, r): a(f"v_exp_f32 v{S[x]+r}, v{S[x]+r}")
    def c(x, d): a(f"v_cvt_pk_bf16_f32 v{P[x]+d}, v{S[x]+2*d}, v{S[x]+2*d+1}")
    def qk(x, slot):
        a(f"v_mfma_f32_32x32x16_bf16 v[{S[x]}:{S[x]+15}], v[{KR+4*slot}:{KR+4*slot+3}], v[{Q[x]}:{Q[x]+3}], v[{NM[x]}:{NM[x]+15}]")
    def pv(x, slot, t):
        a(f"v_mfma_f32_32x32x16_bf16 v[{O[x]}:{O[x]+15}], v[{VR+8*slot+4*t}:{VR+8*slot+4*t+3}], v[{P[x]+4*t}:{P[x]+4*t+3}], v[{O[x]}:{O[x]+15}]")
    for j in range(4):
        for x in range(2):
            y = 1 - x
            if x == 0:
                qk(1, j)
            else:
                a("s_waitcnt vmcnt(6)")
                qk(0, (j+1) & 3)
            e(x,0); e(x,1); e(x,2); e(x,3); c(x,0); e(x,4); e(x,5); c(x,1)
            pv(y, (j-1) & 3 if x == 0 else j, 1)
            e(x,6); e(x,7); c(x,2)
            if x == 0:
                loads((j+3) & 3, 1024*j)
            e(x,8); c(x,3); e(x,9); e(x,10); e(x,11)
            pv(x, j, 0)
            c(x,4); e(x,12); e(x,13); c(x,5); e(x,14); e(x,15); c(x,6); c(x,7)
    a("s_add_u32 s32, s32, 4096")
    a("s_add_u32 s33, s33, 4096")
    a("s_sub_u32 s36, s36, 1")
    a("s_cmp_lg_u32 s36, 0")
    a("s_cbranch_scc1 K3_LOOP")
    a("s_nop 0")
    pv(1, 3, 1)
    a("s_xor_b32 s37, s22, 4")
    a("s_mul_i32 s37, s37, 3072")
    a("v_add_u32 v12, s37, v2")
    a("s_mul_i32 s38, s22, 3072")
    a("v_add_u32 v13, s38, v2")
    a("s_lshl_b32 s39, s27, 5")
    a("s_add_u32 s39, s39, s20")
    a("s_lshl_b32 s39, s39, 10")
    a(f"s_add_u32 s39, s39, {OF}")
    a("s_nop 3")
    a(f"ds_write_b128 v12, v[{O[1]}:{O[1]+3}]")
    a(f"ds_write_b128 v12, v[{O[1]+4}:{O[1]+7}] offset:1024")
    a(f"ds_write_b128 v12, v[{O[1]+8}:{O[1]+11}] offset:2048")
    a("s_waitcnt lgkmcnt(0)")
    a("s_barrier")
    a(f"ds_read_b128 v[{S[0]}:{S[0]+3}], v13")
    a(f"ds_read_b128 v[{S[0]+4}:{S[0]+7}], v13 offset:1024")
    a(f"ds_read_b32 v{S[0]+8}, v13 offset:2048")
    a(f"s_mov_b32 s40, 0x5f800000")
    a("s_waitcnt lgkmcnt(0)")
    for r in range(9):
        a(f"v_add_f32 v{O[0]+r}, v{O[0]+r}, v{S[0]+r}")
    a(f"v_cmp_gt_f32 vcc, s40, v{O[0]+8}")
    a("s_nop 1")
    a("s_cmp_eq_u64 vcc, exec")
    a("s_cbranch_scc0 K3_SLOW")
    a.label("K3_FIN")
    a(f"v_rcp_f32 v{T}, v{O[0]+8}")
    a("s_nop 0")
    for r in range(8):
        a(f"v_mul_f32 v{O[0]+r}, v{O[0]+r}, v{T}")
    for d in range(4):
        a(f"v_cvt_pk_bf16_f32 v{P[0]+d}, v{O[0]+2*d}, v{O[0]+2*d+1}")
    a(f"buffer_store_dwordx4 v[{P[0]}:{P[0]+3}], v2, s[8:11], s39 offen")
    a.label("K3_END")
    a("s_endpgm")

    a.label("K3_SLOW")
    a("s_waitcnt vmcnt(0)")
    a("s_mov_b32 s32, s31")
    a(f"s_add_u32 s33, s31, {VF-KF}")
    a("s_mov_b32 s36, 64")
    for r in range(16):
        a(f"v_mov_b32 v{O[0]+r}, 0")
    a(f"v_mov_b32 v{T+4}, 0xff7fffff")
    a.label("K3_SLOOP")
    loads(0, 0)
    a("s_waitcnt vmcnt(0)")
    a(f"v_mfma_f32_32x32x16_bf16 v[{S[0]}:{S[0]+15}], v[{KR}:{KR+3}], v[{Q[0]}:{Q[0]+3}], 0")
    a("s_nop 15")
    tree(0, T)
    a(f"v_mov_b32 v{T+2}, v{T}")
    a("s_nop 1")
    a(f"v_permlane32_swap_b32 v{T}, v{T+2}")
    a(f"v_max3_f32 v{T}, v{T}, v{T+2}, v{T+4}")
    a(f"v_sub_f32 v{T+2}, v{T+4}, v{T}")
    a(f"v_exp_f32 v{T+2}, v{T+2}")
    a(f"v_mov_b32 v{T+4}, v{T}")
    for r in range(16):
        a(f"v_mul_f32 v{O[0]+r}, v{O[0]+r}, v{T+2}")
    for r in range(16):
        a(f"v_sub_f32 v{S[0]+r}, v{S[0]+r}, v{T}")
    for r in range(16):
        e(0, r)
    a("s_nop 0")
    for d in range(8):
        c(0, d)
    a("s_nop 1")
    pv(0, 0, 0)
    pv(0, 0, 1)
    a("s_add_u32 s32, s32, 1024")
    a("s_add_u32 s33, s33, 1024")
    a("s_sub_u32 s36, s36, 1")
    a("s_nop 15")
    a("s_cmp_lg_u32 s36, 0")
    a("s_cbranch_scc1 K3_SLOOP")
    a("s_branch K3_FIN")
    return ("k3_kernel", NWG3, 512, 8*3072, kernel_desc("k3_kernel", 188, 0, 48))
```

```python
from common import *

NWG4 = 256

def gen_k4(a):
    kernel_begin(a, "k4_kernel")
    a(f"s_cmp_ge_u32 s2, {NWG4}")
    a("s_cbranch_scc1 K4_END")
    load_srd(a, 8, "ws", WS_BYTES)
    load_srd(a, 12, "x", 2048*1024)
    a("s_and_b32 s20, s2, 7")
    a("s_lshl_b32 s20, s20, 2")
    a("s_lshr_b32 s21, s2, 3")
    a("s_and_b32 s21, s21, 3")
    a("s_add_u32 s20, s20, s21")
    a("s_lshr_b32 s21, s2, 5")
    a("v_readfirstlane_b32 s22, v0")
    a("s_lshr_b32 s22, s22, 6")
    a("s_lshr_b32 s23, s22, 1")
    a("s_and_b32 s24, s22, 1")
    a("v_and_b32 v1, 63, v0")
    a("v_lshlrev_b32 v2, 4, v1")
    a("v_add_u32 v3, 4096, v2")
    a("s_lshl_b32 s25, s20, 1")
    a("s_add_u32 s25, s25, s23")
    a("s_lshl_b32 s26, s22, 13")
    a("s_lshl_b32 s27, s25, 15")
    a("s_add_u32 s27, s27, s26")
    a(f"s_add_u32 s27, s27, {OF}")
    a("s_xor_b32 s28, s27, 32768")
    a("s_lshl_b32 s29, s21, 1")
    a("s_add_u32 s29, s29, s24")
    a("s_lshl_b32 s30, s29, 15")
    a("s_add_u32 s30, s30, s26")
    a(f"s_add_u32 s30, s30, {WO}")
    a("s_xor_b32 s31, s30, 32768")
    a("v_and_b32 v4, 31, v1")
    a("v_lshrrev_b32 v5, 5, v1")
    a("v_lshlrev_b32 v6, 10, v4")
    a("v_lshl_add_u32 v6, v5, 5, v6")
    a("s_lshl_b32 s32, s25, 15")
    a("s_lshl_b32 s33, s29, 6")
    a("s_add_u32 s32, s32, s33")
    a(f"s_add_u32 s33, s32, {X1}")
    a("v_lshlrev_b32 v7, 6, v5")
    a("s_lshl_b32 s34, s29, 7")
    a(f"s_add_u32 s35, s34, {MOD+2*2048}")
    a(f"s_add_u32 s36, s34, {CVEC}")
    a("s_waitcnt lgkmcnt(0)")
    for i in range(8):
        va = 2 if i < 4 else 3
        for q, s in enumerate((27, 28, 30, 31)):
            r = (i*4 + q)*4
            a(f"buffer_load_dwordx4 a[{r}:{r+3}], v{va}, s[8:11], s{s} offen offset:{1024*(i&3)}")
    XR, GA, CV = 80, 88, 104
    a(f"buffer_load_dwordx4 v[{XR}:{XR+3}], v6, s[12:15], s32 offen")
    a(f"buffer_load_dwordx4 v[{XR+4}:{XR+7}], v6, s[12:15], s32 offen offset:16")
    for d in range(4):
        a(f"buffer_load_dwordx4 v[{GA+4*d}:{GA+4*d+3}], v7, s[8:11], s35 offen offset:{16*d}")
    for d in range(4):
        a(f"buffer_load_dwordx4 v[{CV+4*d}:{CV+4*d+3}], v7, s[8:11], s36 offen offset:{16*d}")
    for j in range(1, 4):
        a(f"s_xor_b32 s37, s22, {j}")
        a("s_mul_i32 s37, s37, 12288")
        a(f"s_add_u32 s37, s37, {(j-1)*4096}")
        a(f"v_add_u32 v{8+j}, s37, v2")
    a("s_mul_i32 s37, s22, 12288")
    a("v_add_u32 v8, s37, v2")
    ACC = 16
    for i in range(8):
        a(f"s_waitcnt vmcnt({10+28-4*i})")
        for j in range(4):
            o = (i*4 + (j >> 1))*4
            w = (i*4 + 2 + (j & 1))*4
            acc = ACC + 16*j
            c = "0" if i == 0 else f"v[{acc}:{acc+15}]"
            a(f"v_mfma_f32_32x32x16_bf16 v[{acc}:{acc+15}], a[{w}:{w+3}], a[{o}:{o+3}], {c}")
    a("s_nop 9")
    for j in range(1, 4):
        for q in range(4):
            a(f"ds_write_b128 v{8+j}, v[{ACC+16*j+4*q}:{ACC+16*j+4*q+3}] offset:{1024*q}")
    a("v_lshlrev_b32 v12, 2, v4")
    a("v_lshl_add_u32 v12, v5, 13, v12")
    a("s_lshl_b32 s38, s25, 7")
    a(f"s_add_u32 s38, s38, {STATS}")
    a(f"s_add_u32 s39, s38, {2*8192}")
    a("s_waitcnt lgkmcnt(0)")
    a("s_barrier")
    for j in range(1, 4):
        for q in range(4):
            a(f"ds_read_b128 v[{ACC+16*j+4*q}:{ACC+16*j+4*q+3}], v8 offset:{4096*(j-1)+1024*q}")
    for j in range(1, 4):
        a(f"s_waitcnt lgkmcnt({12-4*j})")
        for r in range(0, 16, 2):
            a(f"v_pk_add_f32 v[{ACC+r}:{ACC+r+1}], v[{ACC+r}:{ACC+r+1}], v[{ACC+16*j+r}:{ACC+16*j+r+1}]")
    a("s_waitcnt vmcnt(0)")
    A0 = ACC; T = 32; X = 48
    for d in range(8):
        a(f"v_cvt_pk_bf16_f32 v{T+d}, v{A0+2*d}, v{A0+2*d+1}")
    for d in range(8):
        a(f"v_lshlrev_b32 v{A0+2*d}, 16, v{T+d}")
        a(f"v_and_b32 v{A0+2*d+1}, 0xffff0000, v{T+d}")
    for r in range(0, 16, 2):
        a(f"v_pk_mul_f32 v[{A0+r}:{A0+r+1}], v[{A0+r}:{A0+r+1}], v[{GA+r}:{GA+r+1}]")
    for d in range(8):
        a(f"v_cvt_pk_bf16_f32 v{T+d}, v{A0+2*d}, v{A0+2*d+1}")
    for d in range(8):
        a(f"v_lshlrev_b32 v{A0+2*d}, 16, v{T+d}")
        a(f"v_and_b32 v{A0+2*d+1}, 0xffff0000, v{T+d}")
        a(f"v_lshlrev_b32 v{X+2*d}, 16, v{XR+d}")
        a(f"v_and_b32 v{X+2*d+1}, 0xffff0000, v{XR+d}")
    for r in range(0, 16, 2):
        a(f"v_pk_add_f32 v[{A0+r}:{A0+r+1}], v[{A0+r}:{A0+r+1}], v[{X+r}:{X+r+1}]")
    for d in range(8):
        a(f"v_cvt_pk_bf16_f32 v{T+d}, v{A0+2*d}, v{A0+2*d+1}")
    a(f"buffer_store_dwordx4 v[{T}:{T+3}], v6, s[8:11], s33 offen")
    a(f"buffer_store_dwordx4 v[{T+4}:{T+7}], v6, s[8:11], s33 offen offset:16")
    for d in range(8):
        a(f"v_lshlrev_b32 v{A0+2*d}, 16, v{T+d}")
        a(f"v_and_b32 v{A0+2*d+1}, 0xffff0000, v{T+d}")
    a(f"v_add_f32 v64, v{A0}, v{A0+1}")
    a(f"v_mul_f32 v65, v{A0}, v{A0}")
    a(f"v_mul_f32 v66, v{A0}, v{CV}")
    a(f"v_fmac_f32 v65, v{A0+1}, v{A0+1}")
    a(f"v_fmac_f32 v66, v{A0+1}, v{CV+1}")
    for r in range(2, 16):
        a(f"v_add_f32 v64, v64, v{A0+r}")
        a(f"v_fmac_f32 v65, v{A0+r}, v{A0+r}")
        a(f"v_fmac_f32 v66, v{A0+r}, v{CV+r}")
    a("v_mov_b32 v67, v66")
    a("s_nop 1")
    a("v_permlane32_swap_b32 v64, v65")
    a("v_permlane32_swap_b32 v66, v67")
    a("v_add_f32 v64, v64, v65")
    a("v_add_f32 v66, v66, v67")
    a("buffer_atomic_add_f32 v64, v12, s[8:11], s38 offen")
    a("s_mov_b32 exec_hi, 0")
    a("buffer_atomic_add_f32 v66, v12, s[8:11], s39 offen")
    a.label("K4_END")
    a("s_endpgm")
    return ("k4_kernel", NWG4, 256, 49152, kernel_desc("k4_kernel", 120, 128, 48))
```

```python
from common import *

N_MLP, N_EW = 112, 128
NWG5 = N_MLP + N_EW

def row_stats(a, s1, s2, n, tmp):
    R = range(n)
    for i in R: a(f"v_mul_f32 v{s1+i}, 0x3b000000, v{s1+i}")
    for i in R: a(f"v_mul_f32 v{s2+i}, 0x3b000000, v{s2+i}")
    for i in R: a(f"v_fma_f32 v{s2+i}, -v{s1+i}, v{s1+i}, v{s2+i}")
    for i in R: a(f"v_max_f32 v{s2+i}, 0, v{s2+i}")
    bf16_round(a, [s1+i for i in R] + [s2+i for i in R])
    for i in R: a(f"v_add_f32 v{s2+i}, 0x3727c5ac, v{s2+i}")
    bf16_round(a, [s2+i for i in R])
    for i in R: a(f"v_sqrt_f32 v{s2+i}, v{s2+i}")
    a("s_nop 0")
    bf16_round(a, [s2+i for i in R])
    for i in R: a(f"v_rcp_f32 v{s2+i}, v{s2+i}")
    a("s_nop 0")

def rnd_pairs(a, F, P, n):
    for d in range(n//2):
        a(f"v_cvt_pk_bf16_f32 v{P+d}, v{F+2*d}, v{F+2*d+1}")
    for d in range(n//2):
        a(f"v_lshlrev_b32 v{F+2*d}, 16, v{P+d}")
        a(f"v_and_b32 v{F+2*d+1}, 0xffff0000, v{P+d}")

def h2_compute(a, XF, F, P, n, mean, rstd, SC, SH):
    for e in range(n): a(f"v_sub_f32 v{F+e}, v{XF+e}, v{mean}")
    rnd_pairs(a, F, P, n)
    for e in range(n): a(f"v_mul_f32 v{F+e}, v{F+e}, v{rstd}")
    rnd_pairs(a, F, P, n)
    for e in range(0, n, 2): a(f"v_pk_mul_f32 v[{F+e}:{F+e+1}], v[{F+e}:{F+e+1}], v[{SC+e}:{SC+e+1}]")
    rnd_pairs(a, F, P, n)
    for e in range(0, n, 2): a(f"v_pk_add_f32 v[{F+e}:{F+e+1}], v[{F+e}:{F+e+1}], v[{SH+e}:{SH+e+1}]")
    rnd_pairs(a, F, P, n)

def gen_k5(a):
    kernel_begin(a, "k5_kernel")
    a(f"s_cmp_ge_u32 s2, {NWG5}")
    a("s_cbranch_scc1 K5_END")
    load_srd(a, 8, "ws", WS_BYTES)
    a(f"s_cmp_lt_u32 s2, {N_MLP}")
    a("s_cbranch_scc1 K5_MLP")
    load_srd(a, 12, "out", 2048*1024)
    a(f"s_sub_u32 s20, s2, {N_MLP}")
    a("s_and_b32 s21, s20, 7")
    a("s_lshl_b32 s21, s21, 4")
    a("s_lshr_b32 s20, s20, 3")
    a("s_add_u32 s20, s20, s21")
    a("v_readfirstlane_b32 s22, v0")
    a("s_lshr_b32 s22, s22, 6")
    a("s_lshl_b32 s20, s20, 2")
    a("s_add_u32 s20, s20, s22")
    a("s_lshl_b32 s21, s20, 12")
    a(f"s_add_u32 s23, s21, {X1}")
    a("s_lshl_b32 s24, s20, 4")
    a(f"s_add_u32 s24, s24, {STATS}")
    a("v_and_b32 v1, 63, v0")
    a("v_lshlrev_b32 v2, 4, v1")
    a("v_lshlrev_b32 v3, 5, v1")
    a("v_mov_b32 v4, 0")
    a(f"s_mov_b32 s25, {MOD+3*2048}")
    a(f"s_mov_b32 s26, {MOD+5*2048}")
    a("s_add_u32 s27, s24, 8192")
    a("s_waitcnt lgkmcnt(0)")
    S1, S2, XR, SH, SC, GB = 8, 12, 16, 32, 40, 48
    a(f"buffer_load_dwordx4 v[{S1}:{S1+3}], v4, s[8:11], s24 offen")
    a(f"buffer_load_dwordx4 v[{S2}:{S2+3}], v4, s[8:11], s27 offen")
    for d in range(2):
        a(f"buffer_load_dwordx4 v[{SH+4*d}:{SH+4*d+3}], v3, s[8:11], s25 offen offset:{16*d}")
        a(f"buffer_load_dwordx4 v[{SC+4*d}:{SC+4*d+3}], v3, s[8:11], s25 offen offset:{2048+16*d}")
        a(f"buffer_load_dwordx4 v[{GB+4*d}:{GB+4*d+3}], v3, s[8:11], s26 offen offset:{16*d}")
    for i in range(4):
        a(f"buffer_load_dwordx4 v[{XR+4*i}:{XR+4*i+3}], v2, s[8:11], s23 offen offset:{1024*i}")
    a("s_waitcnt vmcnt(10)")
    row_stats(a, S1, S2, 4, 56)
    XF, F, P = 56, 64, 72
    for i in range(4):
        a(f"s_waitcnt vmcnt(3)")
        for d in range(4):
            a(f"v_lshlrev_b32 v{XF+2*d}, 16, v{XR+4*i+d}")
            a(f"v_and_b32 v{XF+2*d+1}, 0xffff0000, v{XR+4*i+d}")
        h2_compute(a, XF, F, P, 8, S1+i, S2+i, SC, SH)
        for e in range(0, 8, 2): a(f"v_pk_mul_f32 v[{F+e}:{F+e+1}], v[{F+e}:{F+e+1}], v[{GB+e}:{GB+e+1}]")
        rnd_pairs(a, F, P, 8)
        for e in range(0, 8, 2): a(f"v_pk_add_f32 v[{F+e}:{F+e+1}], v[{F+e}:{F+e+1}], v[{XF+e}:{XF+e+1}]")
        for d in range(4):
            a(f"v_cvt_pk_bf16_f32 v{XR+4*i+d}, v{F+2*d}, v{F+2*d+1}")
        a(f"buffer_store_dwordx4 v[{XR+4*i}:{XR+4*i+3}], v2, s[12:15], s21 offen offset:{1024*i}")
    a("s_endpgm")

    a.label("K5_MLP")
    load_srd(a, 12, "wg", 512*3584)
    load_srd(a, 16, "wu", 512*3584)
    load_srd(a, 20, "wd", 1792*1024)
    LG, LU, LH, LR, LA, LT = 0, 16384, 32768, 34816, 35840, 36096
    a("v_readfirstlane_b32 s24, v0")
    a("s_lshr_b32 s24, s24, 6")
    a("v_and_b32 v1, 63, v0")
    a("v_lshlrev_b32 v2, 5, v0")
    a(f"s_mov_b32 s25, {STATS}")
    a(f"s_mov_b32 s26, {STATS+8192}")
    a(f"s_mov_b32 s27, {STATS+16384}")
    a("v_lshrrev_b32 v3, 1, v1")
    a("v_mul_u32_u24 v3, 3584, v3")
    a("v_and_b32 v4, 1, v1")
    a("v_lshl_add_u32 v3, v4, 4, v3")
    a(f"s_mul_i32 s28, s24, {128*3584}")
    a("s_lshl_b32 s29, s2, 5")
    a("s_add_u32 s28, s28, s29")
    a("s_lshl_b32 s30, s24, 12")
    a("v_lshlrev_b32 v5, 2, v0")
    a("s_lshl_b32 s31, s2, 14")
    a(f"v_mov_b32 v6, {CONS}")
    a("s_waitcnt lgkmcnt(0)")
    S1, S2, S3, CC, WD = 8, 16, 24, 32, 36
    for q, s in enumerate((25, 26, 27)):
        for d in range(2):
            a(f"buffer_load_dwordx4 v[{S1+8*q+4*d}:{S1+8*q+4*d+3}], v2, s[8:11], s{s} offen offset:{16*d}")
    a(f"buffer_load_dwordx2 v[{CC}:{CC+1}], v6, s[8:11], 0 offen")
    for q in range(4):
        for mtx, (srd, lb) in enumerate(((12, LG), (16, LU))):
            a(f"s_add_u32 m0, s30, {lb + q*1024}")
            a(f"s_add_u32 s32, s28, {q*32*3584}")
            a(f"buffer_load_dwordx4 v3, s[{srd}:{srd+3}], s32 offen lds")
    for i in range(16):
        if i % 4 == 0:
            a(f"s_add_u32 s32, s31, {1024*i}")
        a(f"buffer_load_dword v{WD+i}, v5, s[20:23], s32 offen offset:{1024*(i&3)}")
    a("v_and_b32 v7, 127, v0")
    a("v_lshlrev_b32 v6, 4, v7")
    a(f"s_mov_b32 s33, {MOD+3*2048}")
    SH, SC = 52, 56
    a(f"buffer_load_dwordx4 v[{SH}:{SH+3}], v6, s[8:11], s33 offen")
    a(f"buffer_load_dwordx4 v[{SC}:{SC+3}], v6, s[8:11], s33 offen offset:2048")
    a("s_waitcnt vmcnt(26)")
    row_stats(a, S1, S2, 8, 60)
    for i in range(8): a(f"v_fma_f32 v{S3+i}, -v{S1+i}, v{CC}, v{S3+i}")
    for i in range(8): a(f"v_fma_f32 v{S3+i}, v{S3+i}, v{S2+i}, v{CC+1}")
    LS = 36864
    a(f"v_add_u32 v60, {LS}, v2")
    for q in range(3):
        for d in range(2):
            a(f"ds_write_b128 v60, v[{S1+8*q+4*d}:{S1+8*q+4*d+3}] offset:{8192*q+16*d}")
    KY = 64
    a("v_lshlrev_b32 v61, 3, v0")
    for i in range(8):
        a(f"v_ashrrev_i32 v62, 31, v{S3+i}")
        a(f"v_or_b32 v62, 0x80000000, v62")
        a(f"v_xor_b32 v{KY+i}, v62, v{S3+i}")
        a(f"v_and_b32 v{KY+i}, 0xfffff800, v{KY+i}")
        a(f"v_add3_u32 v{KY+i}, v{KY+i}, v61, {i}")
    a(f"v_max_u32 v72, v{KY}, v{KY+1}")
    a(f"v_min_u32 v73, v{KY}, v{KY+1}")
    for i in range(2, 8):
        a(f"v_med3_u32 v73, v72, v73, v{KY+i}")
        a(f"v_max_u32 v72, v72, v{KY+i}")
    a("v_mov_b32 v74, v72")
    wave_allsum(a, [74], [75], op="v_max_u32")
    a("v_cmp_eq_u32 vcc, v74, v72")
    a("s_nop 1")
    a("v_cndmask_b32 v75, v72, v73, vcc")
    wave_allsum(a, [75], [76], op="v_max_u32")
    a("s_lshl_b32 s34, s24, 3")
    a(f"s_add_u32 s34, s34, {LT}")
    a("v_mov_b32 v76, s34")
    a("ds_write_b64 v76, v[74:75]")
    a("s_waitcnt lgkmcnt(0)")
    a("s_barrier")
    a(f"v_mov_b32 v76, {LT}")
    a(f"ds_read_b128 v[{KY}:{KY+3}], v76")
    a(f"ds_read_b128 v[{KY+4}:{KY+7}], v76 offset:16")
    a("s_waitcnt lgkmcnt(0)")
    a(f"v_max_u32 v72, v{KY}, v{KY+1}")
    a(f"v_min_u32 v73, v{KY}, v{KY+1}")
    for i in range(2, 8):
        a(f"v_med3_u32 v73, v72, v73, v{KY+i}")
        a(f"v_max_u32 v72, v72, v{KY+i}")
    a("v_cmp_gt_u32 vcc, 128, v0")
    a("s_nop 1")
    a("v_cndmask_b32 v74, v73, v72, vcc")
    a("v_and_b32 v74, 0x7ff, v74")
    a("v_lshlrev_b32 v75, 10, v74")
    a("v_lshl_add_u32 v75, v7, 3, v75")
    a(f"s_mov_b32 s35, {X1}")
    a("buffer_load_dwordx2 v[78:79], v75, s[8:11], s35 offen")
    a("v_lshlrev_b32 v76, 2, v74")
    a(f"ds_read_b32 v80, v76 offset:{LS}")
    a(f"ds_read_b32 v81, v76 offset:{LS+8192}")
    a(f"ds_read_b32 v82, v76 offset:{LS+16384}")
    a("v_lshlrev_b32 v83, 3, v0")
    a(f"v_add_u32 v83, {LH}, v83")
    a("v_and_b32 v84, 1, v1")
    a("v_lshlrev_b32 v84, 10, v84")
    a("v_lshrrev_b32 v85, 4, v1")
    a("v_lshl_add_u32 v84, v85, 4, v84")
    a("s_lshl_b32 s36, s24, 8")
    a(f"s_add_u32 s36, s36, {LH}")
    a("v_add_u32 v84, s36, v84")
    a("v_lshlrev_b32 v86, 8, v85")
    a("v_bfe_u32 v87, v1, 2, 2")
    a("v_lshl_add_u32 v86, v87, 5, v86")
    a("v_and_b32 v87, 3, v1")
    a("v_lshl_add_u32 v86, v87, 3, v86")
    a("v_add_u32 v86, s30, v86")
    a("s_waitcnt vmcnt(0) lgkmcnt(0)")
    XF, F, P = 88, 92, 96
    for d in range(2):
        a(f"v_lshlrev_b32 v{XF+2*d}, 16, v{78+d}")
        a(f"v_and_b32 v{XF+2*d+1}, 0xffff0000, v{78+d}")
    h2_compute(a, XF, F, P, 4, 80, 81, SC, SH)
    a(f"ds_write_b64 v83, v[{P}:{P+1}]")
    a("s_cmp_lg_u32 s2, 0")
    a("s_cbranch_scc1 K5_NOSEL")
    a("v_lshlrev_b32 v98, 3, v0")
    a(f"s_mov_b32 s37, {SEL}")
    a(f"buffer_store_dwordx2 v[{P}:{P+1}], v98, s[8:11], s37 offen offset:1024")
    a(f"buffer_store_dwordx2 v[78:79], v98, s[8:11], s37 offen offset:3072")
    bf16_round(a, [82])
    a(f"v_mul_f32 v99, {hex(NLOG2E)}, v82")
    a("v_exp_f32 v99, v99")
    a("s_nop 0")
    a("v_add_f32 v99, 1.0, v99")
    a("v_rcp_f32 v99, v99")
    a("s_nop 0")
    bf16_round(a, [99])
    a("v_lshrrev_b32 v98, 7, v0")
    a("v_lshlrev_b32 v98, 2, v98")
    a("v_cmp_eq_u32 vcc, 0, v7")
    a("s_and_saveexec_b64 s[38:39], vcc")
    a("s_cbranch_execz K5_SELX")
    a("buffer_store_dword v74, v98, s[8:11], s37 offen")
    a("buffer_store_dword v99, v98, s[8:11], s37 offen offset:8")
    a.label("K5_SELX")
    a("s_mov_b64 exec, s[38:39]")
    a.label("K5_NOSEL")
    a("s_waitcnt lgkmcnt(0)")
    a("s_barrier")
    AFr, BG, BU = 100, 116, 132
    for q in range(4):
        a(f"ds_read_b128 v[{AFr+4*q}:{AFr+4*q+3}], v84 offset:{64*q}")
        for hh in range(2):
            a(f"ds_read_b64_tr_b16 v[{BG+4*q+2*hh}:{BG+4*q+2*hh+1}], v86 offset:{LG+1024*q+128*hh}")
        for hh in range(2):
            a(f"ds_read_b64_tr_b16 v[{BU+4*q+2*hh}:{BU+4*q+2*hh+1}], v86 offset:{LU+1024*q+128*hh}")
        if q == 1:
            a("s_waitcnt lgkmcnt(0)")
    a("s_waitcnt lgkmcnt(0)")
    for q in range(4):
        cg = "0" if q == 0 else "v[148:151]"
        cu = "0" if q == 0 else "v[152:155]"
        a(f"v_mfma_f32_16x16x32_bf16 v[148:151], v[{AFr+4*q}:{AFr+4*q+3}], v[{BG+4*q}:{BG+4*q+3}], {cg}")
        a(f"v_mfma_f32_16x16x32_bf16 v[152:155], v[{AFr+4*q}:{AFr+4*q+3}], v[{BU+4*q}:{BU+4*q+3}], {cu}")
    a("v_lshlrev_b32 v98, 6, v1")
    a("s_lshl_b32 s37, s24, 4")
    a(f"s_add_u32 s37, s37, {LR}")
    a("v_add_u32 v98, s37, v98")
    a("s_nop 4")
    a("v_mov_b32 v150, v152")
    a("v_mov_b32 v151, v153")
    a("s_mov_b64 exec, 0xffff")
    a("ds_write_b128 v98, v[148:151]")
    a("s_mov_b64 exec, -1")
    a("s_waitcnt lgkmcnt(0)")
    a("s_barrier")
    a("v_and_b32 v98, 15, v1")
    a("v_lshlrev_b32 v98, 6, v98")
    for w in range(4):
        a(f"ds_read_b128 v[{100+4*w}:{103+4*w}], v98 offset:{LR+16*w}")
    a("s_waitcnt lgkmcnt(0)")
    for w in range(1, 4):
        for e in range(4):
            a(f"v_add_f32 v{100+e}, v{100+e}, v{100+4*w+e}")
    bf16_round(a, [100, 101, 102, 103])
    for e in range(2): a(f"v_mul_f32 v{104+e}, {hex(NLOG2E)}, v{100+e}")
    for e in range(2): a(f"v_exp_f32 v{104+e}, v{104+e}")
    a("s_nop 0")
    for e in range(2): a(f"v_add_f32 v{104+e}, 1.0, v{104+e}")
    for e in range(2): a(f"v_rcp_f32 v{104+e}, v{104+e}")
    a("s_nop 0")
    for e in range(2): a(f"v_mul_f32 v{100+e}, v{100+e}, v{104+e}")
    bf16_round(a, [100, 101])
    for e in range(2): a(f"v_mul_f32 v{100+e}, v{100+e}, v{102+e}")
    bf16_round(a, [100, 101])
    a("s_nop 0")
    for tk in range(2):
        for n in range(16):
            a(f"v_readlane_b32 s{40+16*tk+n}, v{100+tk}, {n}")
    a("s_nop 1")
    for i in range(16):
        a(f"v_lshlrev_b32 v104, 16, v{WD+i}")
        a(f"v_and_b32 v105, 0xffff0000, v{WD+i}")
        for tk in range(2):
            op = "v_mul_f32" if i == 0 else "v_fmac_f32"
            a(f"{op} v{108+2*tk}, s{40+16*tk+i}, v104")
            a(f"{op} v{109+2*tk}, s{40+16*tk+i}, v105")
    a("v_lshlrev_b32 v98, 3, v0")
    a("s_lshl_b32 s37, s2, 12")
    a(f"s_add_u32 s37, s37, {YP}")
    a("buffer_store_dwordx2 v[108:109], v98, s[8:11], s37 offen")
    a("buffer_store_dwordx2 v[110:111], v98, s[8:11], s37 offen offset:2048")
    a.label("K5_END")
    a("s_endpgm")
    return ("k5_kernel", NWG5, 256, 36864+24576, kernel_desc("k5_kernel", 156, 0, 80))

NWG6 = 16
def gen_k6(a):
    kernel_begin(a, "k6_kernel")
    a(f"s_cmp_ge_u32 s2, {NWG6}")
    a("s_cbranch_scc1 K6_END")
    load_srd(a, 8, "ws", WS_BYTES)
    load_srd(a, 12, "out", 2048*1024)
    a("v_lshrrev_b32 v1, 4, v0")
    a("v_and_b32 v2, 15, v0")
    a("v_lshlrev_b32 v3, 12, v1")
    a("v_lshrrev_b32 v4, 3, v2")
    a("v_and_b32 v5, 7, v2")
    a("v_lshl_add_u32 v3, v4, 11, v3")
    a("v_lshl_add_u32 v3, v5, 4, v3")
    a("s_lshl_b32 s20, s2, 7")
    a(f"s_add_u32 s21, s20, {YP}")
    a("v_lshlrev_b32 v6, 2, v4")
    a("v_lshlrev_b32 v7, 10, v4")
    a("v_lshl_add_u32 v7, v5, 3, v7")
    a("s_lshl_b32 s22, s2, 6")
    a(f"s_add_u32 s23, s22, {SEL}")
    a(f"s_mov_b32 s24, {SEL}")
    a("v_lshlrev_b32 v8, 4, v5")
    a(f"s_add_u32 s25, s20, {MOD+5*2048}")
    a("s_waitcnt lgkmcnt(0)")
    for i in range(7):
        a(f"buffer_load_dwordx4 v[{12+4*i}:{15+4*i}], v3, s[8:11], s21 offen")
        if i < 6: a(f"s_add_u32 s21, s21, 65536")
    a("buffer_load_dword v40, v6, s[8:11], s24 offen")
    a("buffer_load_dword v41, v6, s[8:11], s24 offen offset:8")
    a("buffer_load_dwordx2 v[42:43], v7, s[8:11], s23 offen offset:1024")
    a("buffer_load_dwordx2 v[44:45], v7, s[8:11], s23 offen offset:3072")
    a("buffer_load_dwordx4 v[48:51], v8, s[8:11], s25 offen")
    a("v_lshlrev_b32 v9, 4, v2")
    a("v_lshl_add_u32 v10, v1, 8, v9")
    for i in range(1, 7):
        a(f"s_waitcnt vmcnt({5+6-i})")
        for e in range(4):
            a(f"v_add_f32 v{12+e}, v{12+e}, v{12+4*i+e}")
    a("ds_write_b128 v10, v[12:15]")
    a("v_readfirstlane_b32 s26, v0")
    a("s_waitcnt lgkmcnt(0)")
    a("s_barrier")
    a("s_cmp_ge_u32 s26, 64")
    a("s_cbranch_scc1 K6_END")
    for p in range(16):
        a(f"ds_read_b128 v[{52+4*p}:{55+4*p}], v9 offset:{256*p}")
        if p == 7: a("s_waitcnt lgkmcnt(0)")
    a("s_waitcnt vmcnt(0) lgkmcnt(0)")
    for st in (8, 4, 2, 1):
        for p in range(st):
            for e in range(4):
                a(f"v_add_f32 v{52+4*p+e}, v{52+4*p+e}, v{52+4*(p+st)+e}")
    Y = 52
    rnd_pairs(a, Y, 60, 4)
    for e in range(4): a(f"v_mul_f32 v{Y+e}, v{Y+e}, v41")
    rnd_pairs(a, Y, 60, 4)
    for d in range(2):
        a(f"v_lshlrev_b32 v{64+2*d}, 16, v{42+d}")
        a(f"v_and_b32 v{65+2*d}, 0xffff0000, v{42+d}")
        a(f"v_lshlrev_b32 v{68+2*d}, 16, v{44+d}")
        a(f"v_and_b32 v{69+2*d}, 0xffff0000, v{44+d}")
    for e in range(4): a(f"v_add_f32 v{Y+e}, v{Y+e}, v{64+e}")
    rnd_pairs(a, Y, 60, 4)
    for e in range(4): a(f"v_mul_f32 v{Y+e}, v{Y+e}, v{48+e}")
    rnd_pairs(a, Y, 60, 4)
    for e in range(4): a(f"v_add_f32 v{Y+e}, v{Y+e}, v{68+e}")
    for d in range(2):
        a(f"v_cvt_pk_bf16_f32 v{60+d}, v{Y+2*d}, v{Y+2*d+1}")
    a("v_and_b32 v40, 0x7ff, v40")
    a("v_lshlrev_b32 v40, 10, v40")
    a("v_lshl_add_u32 v40, v5, 3, v40")
    a("s_mov_b64 exec, 0xffff")
    a("buffer_store_dwordx2 v[60:61], v40, s[12:15], s22 offen")
    a.label("K6_END")
    a("s_endpgm")
    return ("k6_kernel", NWG6, 256, 4096, kernel_desc("k6_kernel", 116, 0, 32))
```

```python
import sys
from common import *
from k1 import gen_k1
from k2 import gen_k2
from k3 import gen_k3
from k4 import gen_k4
from k5 import gen_k5, gen_k6

HDR = open("adaLN_cond__mha_block__moe_arch_mod__prompt.s.ref").read().split("; Override launch")[0]

def main(out):
    a = Asm()
    ks = [g(a) for g in (gen_k1, gen_k2, gen_k3, gen_k4, gen_k5, gen_k6)]
    s = HDR
    for name, g, b, lds, _ in ks:
        s += f"; @launch kernel={name} grid=({g},1,1) block=({b},1,1) lds={lds}\n"
    s += '.amdgcn_target "amdgcn-amd-amdhsa--gfx950"\n'
    s += a.text()
    s += '.section .rodata,"a"\n'
    for k in ks:
        s += ".p2align 6\n" + k[4]
    open(out, "w").write(s)

if __name__ == "__main__":
    main(sys.argv[1] if len(sys.argv) > 1 else "adaLN_cond__mha_block__moe_arch_mod__prompt.s")
```

```python
import sys

def kernel(name, body, iters=200, nvgpr=256, pre=""):
    s = f"""
.text
.globl {name}
.p2align 8
.type {name},@function
{name}:
    s_load_dwordx2 s[4:5], s[0:1], 0
    s_waitcnt lgkmcnt(0)
    s_mov_b32 s8, s4
    s_mov_b32 s9, s5
    s_mov_b32 s10, 0x100000
    s_mov_b32 s11, 0x00020000
    v_lshrrev_b32 v1, 6, v0
    s_lshl_b32 s3, s2, 4
    v_add_u32 v1, s3, v1
    v_lshlrev_b32 v1, 2, v1
"""
    for r in range(2, nvgpr):
        s += f"    v_mov_b32 v{r}, 0.5\n"
    s += pre
    s += f"""
    s_mov_b32 s20, {iters}
    s_barrier
    s_memtime s[12:13]
    s_waitcnt lgkmcnt(0)
.p2align 6
L_{name}:
{body}
    s_sub_u32 s20, s20, 1
    s_cmp_lg_u32 s20, 0
    s_cbranch_scc1 L_{name}
    s_nop 15
    s_nop 15
    s_memtime s[14:15]
    s_waitcnt lgkmcnt(0)
    s_sub_u32 s14, s14, s12
    v_mov_b32 v2, s14
    buffer_store_dword v2, v1, s[8:11], 0 offen
    s_waitcnt vmcnt(0)
    s_endpgm
.section .rodata,"a"
.p2align 6
.amdhsa_kernel {name}
  .amdhsa_next_free_vgpr {nvgpr}
  .amdhsa_next_free_sgpr 32
  .amdhsa_accum_offset {nvgpr}
  .amdhsa_group_segment_fixed_size 0
  .amdhsa_kernarg_size 8
  .amdhsa_user_sgpr_count 2
  .amdhsa_user_sgpr_kernarg_segment_ptr 1
  .amdhsa_system_sgpr_workgroup_id_x 1
.end_amdhsa_kernel
"""
    return s

def meta(names, nvgpr):
    s = ".amdgpu_metadata\n---\namdhsa.version: [1, 2]\namdhsa.kernels:\n"
    for n in names:
        s += f"""  - .name: {n}
    .symbol: {n}.kd
    .kernarg_segment_size: 8
    .kernarg_segment_align: 8
    .group_segment_fixed_size: 0
    .private_segment_fixed_size: 0
    .wavefront_size: 64
    .sgpr_count: 32
    .vgpr_count: {nvgpr}
    .max_flat_workgroup_size: 1024
    .args:
      - {{.name: kernargs, .size: 8, .offset: 0, .value_kind: by_value}}
"""
    s += "...\n.end_amdgpu_metadata\n"
    return s

def build(kernels, fn, nvgpr=128):
    s = '.amdgcn_target "amdgcn-amd-amdhsa--gfx950"\n'
    for name, body in kernels:
        s += kernel(name, body, nvgpr=nvgpr)
    s += meta([k[0] for k in kernels], nvgpr)
    open(fn, "w").write(s)
```

```python
from mbgen import meta
Q = [4, 8]; NM = [12, 28]; O = [44, 60]; S = [76, 92]; P = 108; KR = 116; VR = 132
def body(loads=True, togg=True, dep=True, mf=True, ntile=4, order=0, sepP=False, lds=0):
    L = []
    a = L.append
    def Pr(x): return P if not sepP else (P if x == 0 else 164)
    def e(x, r): a(f"v_exp_f32 v{S[x]+r}, v{S[x]+r}" if dep else f"v_exp_f32 v{172+(r&7)}, v{NM[x]+r}")
    def c(x, d): a(f"v_cvt_pk_bf16_f32 v{Pr(x)+d}, v{S[x]+2*d}, v{S[x]+2*d+1}" if dep else f"v_cvt_pk_bf16_f32 v{180+(d&3)}, v{NM[x]+2*d}, v{NM[x]+2*d+1}")
    def qk(x, slot):
        if mf: a(f"v_mfma_f32_32x32x16_bf16 v[{S[x]}:{S[x]+15}], v[{KR+4*slot}:{KR+4*slot+3}], v[{Q[x]}:{Q[x]+3}], v[{NM[x]}:{NM[x]+15}]")
    def pv(x, slot, t):
        if mf: a(f"v_mfma_f32_32x32x16_bf16 v[{O[x]}:{O[x]+15}], v[{VR+8*slot+4*t}:{VR+8*slot+4*t+3}], v[{Pr(x)+4*t}:{Pr(x)+4*t+3}], v[{O[x]}:{O[x]+15}]")
    def ld(slot, off):
        if not loads: return
        if lds:
            o = (off//1024)*2064
            a(f"ds_read_b128 v[{KR+4*slot}:{KR+4*slot+3}], v2 offset:{o}")
            a(f"ds_read_b128 v[{VR+8*slot}:{VR+8*slot+3}], v3 offset:{o+1024}")
            a(f"ds_read_b128 v[{VR+8*slot+4}:{VR+8*slot+7}], v3 offset:{o+1536}")
            return
        a(f"buffer_load_dwordx4 v[{KR+4*slot}:{KR+4*slot+3}], v2, s[24:27], s28 offen offset:{off}")
        if togg: a("s_mov_b64 exec, s[30:31]")
        a(f"buffer_load_dwordx4 v[{VR+8*slot}:{VR+8*slot+3}], v3, s[24:27], s29 offen offset:{off}")
        a(f"buffer_load_dwordx4 v[{VR+8*slot+4}:{VR+8*slot+7}], v3, s[24:27], s29 offen offset:{off+512}")
        if togg: a("s_mov_b64 exec, -1")
    for jj in range(ntile):
        j = jj & 3
        for x in range(2):
            y = 1 - x
            if x == 0: qk(1, j)
            else:
                if loads: a("s_waitcnt vmcnt(6)" if not lds else "s_waitcnt lgkmcnt(6)")
                qk(0, (j+1) & 3)
            if order == 0:
                e(x,0); e(x,1); e(x,2); e(x,3); c(x,0); e(x,4); e(x,5); c(x,1)
                pv(y, (j-1) & 3 if x == 0 else j, 1)
                e(x,6); e(x,7); c(x,2)
                if x == 0: ld((j+3) & 3, 1024*j)
                e(x,8); c(x,3); e(x,9); e(x,10); e(x,11)
                pv(x, j, 0)
                c(x,4); e(x,12); e(x,13); c(x,5); e(x,14); e(x,15); c(x,6); c(x,7)
            elif order == 1:
                c(y,6); e(x,0); c(y,7); e(x,1); e(x,2); e(x,3); e(x,4); c(x,0)
                pv(y, (j-1) & 3 if x == 0 else j, 1)
                e(x,5); e(x,6); c(x,1); e(x,7)
                if x == 0: ld((j+3) & 3, 1024*j)
                e(x,8); c(x,2); e(x,9); e(x,10); c(x,3); e(x,11); e(x,12)
                pv(x, j, 0)
                e(x,13); c(x,4); e(x,14); e(x,15); c(x,5)
            elif order == 2:
                e(x,0); e(x,1); e(x,2); e(x,3); e(x,4); e(x,5); e(x,6); e(x,7)
                pv(y, (j-1) & 3 if x == 0 else j, 1)
                c(x,0); c(x,1); c(x,2); c(x,3)
                if x == 0: ld((j+3) & 3, 1024*j)
                e(x,8); e(x,9); e(x,10); e(x,11)
                pv(x, j, 0)
                e(x,12); e(x,13); e(x,14); e(x,15); c(x,4); c(x,5); c(x,6); c(x,7)
        if j == 3 and loads:
            if lds: a("v_xor_b32 v2, 0x4000, v2"); a("v_xor_b32 v3, 0x4000, v3")
            else: a("s_add_u32 s28, s28, 4096"); a("s_add_u32 s29, s29, 4096")
    return "\n".join("    " + x for x in L)
def kernel(name, b, iters, prio=""):
    s = f"""
.text
.globl {name}
.p2align 8
.type {name},@function
{name}:
    s_load_dwordx2 s[4:5], s[0:1], 0
    s_waitcnt lgkmcnt(0)
    s_mov_b32 s8, s4
    s_mov_b32 s9, s5
    s_mov_b32 s10, 0x100000
    s_mov_b32 s11, 0x00020000
    s_add_u32 s24, s4, 0x100000
    s_addc_u32 s25, s5, 0
    s_mov_b32 s26, 0x800000
    s_mov_b32 s27, 0x00020000
    s_and_b32 s28, s2, 31
    s_lshl_b32 s28, s28, 16
    s_add_u32 s29, s28, 0x200000
    s_mov_b32 s30, 0xffff
    s_mov_b32 s31, 0xffff
    v_lshrrev_b32 v1, 6, v0
    v_readfirstlane_b32 s22, v1
    s_lshl_b32 s3, s2, 4
    v_add_u32 v1, s3, v1
    v_lshlrev_b32 v1, 3, v1
    v_and_b32 v3, 63, v0
    v_lshlrev_b32 v2, 4, v3
    v_lshrrev_b32 v4, 5, v3
    v_and_b32 v3, 15, v3
    v_lshlrev_b32 v3, 4, v3
    v_lshl_add_u32 v3, v4, 8, v3
    s_mov_b32 s21, 0x9E3779B1
    v_add_u32 v187, 12345, v0
"""
    for r in range(4, 187):
        s += f"    v_mul_lo_u32 v187, v187, s21\n    v_add_u32 v187, {r*7919+1}, v187\n    v_lshrrev_b32 v{r}, 3, v187\n    v_xor_b32 v{r}, v{r}, v187\n    v_and_b32 v{r}, 0x81ff81ff, v{r}\n    v_or_b32 v{r}, 0x3c003c00, v{r}\n"
    s += f"""
    v_lshlrev_b32 v187, 4, v0
    ds_write_b128 v187, v[8:11] offset:0
    ds_write_b128 v187, v[12:15] offset:8192
    ds_write_b128 v187, v[16:19] offset:16384
    ds_write_b128 v187, v[20:23] offset:24576
    s_waitcnt lgkmcnt(0)
    s_mov_b32 s20, {iters}
{prio}
    s_barrier
    s_memtime s[12:13]
    s_memrealtime s[16:17]
    s_waitcnt lgkmcnt(0)
.p2align 6
L_{name}:
{b}
    s_sub_u32 s20, s20, 1
    s_cmp_lg_u32 s20, 0
    s_cbranch_scc1 L_{name}
    s_nop 15
    s_memtime s[14:15]
    s_memrealtime s[18:19]
    s_waitcnt lgkmcnt(0)
    s_sub_u32 s14, s14, s12
    s_sub_u32 s18, s18, s16
    v_mov_b32 v2, s14
    v_mov_b32 v3, s18
    buffer_store_dwordx2 v[2:3], v1, s[8:11], 0 offen
    s_waitcnt vmcnt(0)
    s_endpgm
.section .rodata,"a"
.p2align 6
.amdhsa_kernel {name}
  .amdhsa_next_free_vgpr 188
  .amdhsa_next_free_sgpr 32
  .amdhsa_accum_offset 188
  .amdhsa_group_segment_fixed_size 65536
  .amdhsa_kernarg_size 8
  .amdhsa_user_sgpr_count 2
  .amdhsa_user_sgpr_kernarg_segment_ptr 1
  .amdhsa_system_sgpr_workgroup_id_x 1
.end_amdhsa_kernel
"""
    return s
PR = "    s_cmp_lt_u32 s22, 4\n    s_cbranch_scc1 1f\n    s_setprio 1\n1:\n"
K = [("a_base", body(), 8), ("a_noload", body(loads=False), 8), ("a_lds", body(lds=1), 8), ("a_base2", body(), 8), ("a_lds2", body(lds=1), 8)]
s = '.amdgcn_target "amdgcn-amd-amdhsa--gfx950"\n' + "".join(kernel(*k) for k in K) + meta([k[0] for k in K], 188).replace('.group_segment_fixed_size: 0', '.group_segment_fixed_size: 65536')
open("mb7.s", "w").write(s)
open("mb7.names", "w").write(" ".join(k[0] for k in K))
```
